```python
import torch

def _softmax(x, axis=-1):
    return torch.softmax(x, dim=axis)
def _gelu(x):
    return torch.nn.functional.gelu(x, approximate="tanh")
def _silu(x):
    return torch.nn.functional.silu(x)
def _sigmoid(x):
    return torch.sigmoid(x)
def _layernorm(x, axis=-1, eps=1e-5):
    m = x.mean(dim=axis, keepdim=True)
    v = x.var(dim=axis, keepdim=True, unbiased=False)
    return (x - m) / torch.sqrt(v + eps)
def _scatter_add(tgt, idx, src, axis=0):
    return tgt.clone().index_add_(axis, idx, src)
def _segment_sum(src, seg, n):
    out = torch.zeros((n,) + src.shape[1:], dtype=src.dtype)
    return out.index_add_(0, seg, src)
def _pad(x, pw):
    flat = tuple(v for pair in reversed(pw) for v in pair)
    return torch.nn.functional.pad(x, flat)

kernel_name = 'sequential_preLN__sliding_local_dilated__glu_gated_swiglu__prompt'

def setup_inputs():

    _w = (lambda a: (lambda t: t.to(torch.bfloat16) if t.is_floating_point() else t)(torch.as_tensor(a)))
    def _A_setup():
        B, S, D = 1, 2048, 448
        return {
            "x": _w((lambda *s: torch.randn(*s, dtype=torch.bfloat16) * 0.05)(B, S, D)),
            "wqkv": _w((lambda *s: torch.randn(*s, dtype=torch.bfloat16) * 0.05)(D, 3 * D)),
            "wo": _w((lambda *s: torch.randn(*s, dtype=torch.bfloat16) * 0.05)(D, D)),
        }
    _A_in = _A_setup()

    def _B_setup():
        B, S, D, F = 1, 2048, 448, 1792
        return {
            "x": _w((lambda *s: torch.randn(*s, dtype=torch.bfloat16) * 0.05)(B, S, D)),
            "w1": _w((lambda *s: torch.randn(*s, dtype=torch.bfloat16) * 0.8)(D, F) * (2.0 / D) ** 0.5),
            "w3": _w((lambda *s: torch.randn(*s, dtype=torch.bfloat16) * 0.8)(D, F) * (2.0 / D) ** 0.5),
            "w2": _w((lambda *s: torch.randn(*s, dtype=torch.bfloat16) * 0.8)(F, D) * (2.0 / F) ** 0.5),
        }
    _B_in = _B_setup()

    return {
        "A_x": _A_in["x"],
        "A_wqkv": _A_in["wqkv"],
        "A_wo": _A_in["wo"],
        "B_x": _B_in["x"],
        "B_w1": _B_in["w1"],
        "B_w3": _B_in["w3"],
        "B_w2": _B_in["w2"],
    }

def reference(A_x, A_wqkv, A_wo, B_x, B_w1, B_w3, B_w2):
    def _A_ref(x, wqkv, wo):
        B, S, D = x.shape
        H = 16; Dh = D // H
        W, dil = 8, 2
        qkv = (lambda x, *d: x.permute(*d))((x @ wqkv).reshape(B, S, 3, H, Dh), 2, 0, 3, 1, 4)
        q, k, v = qkv[0], qkv[1], qkv[2]
        scale = Dh ** -0.5
        pos = torch.arange(S)
        off = torch.arange(W) * dil
        idx = pos[:, None] - off[None, :]
        mask = idx >= 0
        idx_c = torch.where(mask, idx, 0).reshape(-1)
        kg = k[:, :, idx_c, :].reshape(B, H, S, W, Dh)
        vg = v[:, :, idx_c, :].reshape(B, H, S, W, Dh)
        logits = torch.einsum("bhsd,bhswd->bhsw", q, kg) * scale
        logits = torch.where(mask[None, None, :, :], logits, -1e9)
        attn = _softmax(logits, axis=-1)
        o = torch.einsum("bhsw,bhswd->bhsd", attn, vg)
        return (lambda x, *d: x.permute(*d))(o, 0, 2, 1, 3).reshape(B, S, D) @ wo

    def _B_ref(x, w1, w3, w2):
        gate = torch.einsum("bsd,df->bsf", x, w1)
        up = torch.einsum("bsd,df->bsf", x, w3)
        h = _silu(gate) * up
        out = torch.einsum("bsf,fd->bsd", h, w2)
        return out

    x = A_x
    h = x + _A_ref(_layernorm(x, axis=-1), A_wqkv, A_wo)
    h2 = h + _B_ref(_layernorm(h, axis=-1), B_w1, B_w3, B_w2)
    return h2
```

```python
class Asm:
    def __init__(self):
        self.lines = []
        self.vm = []
        self.lg = []
        self.uid = 0
    def e(self, s):
        for l in s.split("\n"):
            l = l.strip()
            if l:
                self.lines.append("  " + l)
    def c(self, s):
        self.lines.append("  ; " + s)
    def label(self, n):
        self.lines.append(n + ":")
    def newlabel(self, p):
        self.uid += 1
        return f"{p}_{self.uid}"
    def vmem(self, s, tag=None):
        self.e(s)
        self.vm.append(tag)
    def wait_vm(self, tags, extra=""):
        if not isinstance(tags, (set, list)):
            tags = [tags]
        idx = -1
        for i, t in enumerate(self.vm):
            if t in tags:
                idx = i
        if idx < 0:
            return False
        n = len(self.vm) - 1 - idx
        assert n <= 63, n
        self.e(f"s_waitcnt vmcnt({n})")
        self.vm = self.vm[idx + 1:]
        return True
    def wait_vm_all(self):
        self.e("s_waitcnt vmcnt(0)")
        self.vm = []
    def lds(self, s, tag=None):
        if len(self.lg) >= 15:
            k = len(self.lg) - 14
            self.e("s_waitcnt lgkmcnt(14)")
            self.lg = self.lg[k:]
        self.e(s)
        self.lg.append(tag)
    def wait_lg(self, tags):
        if not isinstance(tags, (set, list)):
            tags = [tags]
        idx = -1
        for i, t in enumerate(self.lg):
            if t in tags:
                idx = i
        if idx < 0:
            return False
        n = len(self.lg) - 1 - idx
        if n > 15:
            n = 15
            idx = len(self.lg) - 1 - n
        self.e(f"s_waitcnt lgkmcnt({n})")
        self.lg = self.lg[idx + 1:]
        return True
    def wait_lg_all(self):
        self.e("s_waitcnt lgkmcnt(0)")
        self.lg = []
    def text(self):
        return "\n".join(self.lines) + "\n"

def vr(base, n=1):
    return f"v{base}" if n == 1 else f"v[{base}:{base+n-1}]"
def ar(base, n=1):
    return f"a{base}" if n == 1 else f"a[{base}:{base+n-1}]"
def sr(base, n=1):
    return f"s{base}" if n == 1 else f"s[{base}:{base+n-1}]"
```

```python
from asmlib import *
NAME = "sequential_preLN__sliding_local_dilated__glu_gated_swiglu__prompt"
S_TOK, D, F = 2048, 448, 1792
WS_O, WS_H, WS_HH, WS_ST, WS_CS = 0x0, 0x200000, 0x400000, 0xC00000, 0xD00000
WS_SIZE = 0x10000000
X_BYTES = S_TOK * D * 2
WQKV_BYTES = D * 3 * D * 2
WO_BYTES = D * D * 2
W1_BYTES = D * F * 2
W2_BYTES = F * D * 2
OUT_BYTES = S_TOK * D * 2
SRD3 = 0x20000

S_X, S_WQKV, S_WO, S_W1, S_W3, S_W2, S_OUT, S_DBG, S_WS = 4, 6, 8, 12, 14, 16, 18, 20, 22
SRD_WS, SRD_A, SRD_B, SRD_C = 24, 28, 32, 36
S_WAVE, S_XCD, S_IDX = 44, 45, 46

def srd(a, d, ptr, size):
    a.e(f"s_mov_b32 s{d}, s{ptr}")
    a.e(f"s_mov_b32 s{d+1}, s{ptr+1}")
    a.e(f"s_mov_b32 s{d+2}, {size:#x}")
    a.e(f"s_mov_b32 s{d+3}, {SRD3:#x}")

def div_small(a, dst, src, d, tmp):
    m = (65536 + d - 1) // d
    for s in range(64):
        assert (s * m) >> 16 == s // d
    a.e(f"s_mul_i32 s{dst}, s{src}, {m}")
    a.e(f"s_lshr_b32 s{dst}, s{dst}, 16")
```

```python
from common import *

LOG2E = 1.4426950408889634
import struct
def fbits(x):
    return struct.unpack("<I", struct.pack("<f", x))[0]

class Filler:
    def __init__(self):
        self.q = []
    def add(self, f):
        self.q.append(f)
    def drain(self, n):
        for _ in range(n):
            if not self.q:
                return
            self.q.pop(0)()
    def drain_all(self):
        while self.q:
            self.q.pop(0)()

def phase3(a):
    S_RB, S_FB, S_T0, S_T1, S_TB = 47, 48, 49, 50, 51
    S_WB, S_LW, S_HH0, S_HH1, S_H = 52, 53, 54, 55, 56
    R = 32
    CS_LDS = R * 4096
    V_DW, V_L16, V_T0, V_T1, V_T2, V_T3 = 2, 3, 4, 5, 6, 7
    V_A = 8
    V_CS, V_NM, V_RG, V_IR2 = 16, 17, 18, 19
    V_T, V_D, V_CSG, V_CSU = 20, 28, 32, 40
    V_W = 48
    ACC = [112, 176]
    V_ST = 176
    div_small(a, S_T0, S_IDX, 14, None)
    a.e(f"s_mul_i32 s{S_T1}, s{S_T0}, 14")
    a.e(f"s_sub_u32 s{S_FB}, s{S_IDX}, s{S_T1}")
    a.e(f"s_lshl_b32 s{S_RB}, s{S_XCD}, 1")
    a.e(f"s_add_u32 s{S_RB}, s{S_RB}, s{S_T0}")
    a.e(f"s_lshl_b32 s{S_TB}, s{S_RB}, 2")
    a.e(f"s_add_u32 s{S_TB}, s{S_TB}, s{S_WAVE}")
    a.e(f"s_cmp_lt_u32 s{S_WAVE}, 2")
    a.e(f"s_cselect_b32 s{SRD_A}, s{S_W1}, s{S_W3}")
    a.e(f"s_cselect_b32 s{SRD_A+1}, s{S_W1+1}, s{S_W3+1}")
    a.e(f"s_mov_b32 s{SRD_A+2}, {W1_BYTES:#x}")
    a.e(f"s_mov_b32 s{SRD_A+3}, {SRD3:#x}")
    a.e(f"s_lshl_b32 s{S_WB}, s{S_FB}, 8")
    a.e(f"s_lshl_b32 s{S_LW}, s{S_WAVE}, 10")
    a.e(f"v_lshrrev_b32 v{V_T0}, 3, v1")
    a.e(f"s_and_b32 s{S_T0}, s{S_WAVE}, 1")
    a.e(f"s_lshl_b32 s{S_T0}, s{S_T0}, 3")
    a.e(f"v_add_u32 v{V_T0}, s{S_T0}, v{V_T0}")
    a.e(f"v_mul_u32_u24 v{V_DW}, 3584, v{V_T0}")
    a.e(f"v_bfe_u32 v{V_T1}, v1, 4, 1")
    a.e(f"s_lshr_b32 s{S_T0}, s{S_WAVE}, 1")
    a.e(f"s_lshl_b32 s{S_T0}, s{S_T0}, 1")
    a.e(f"v_or_b32 v{V_T1}, s{S_T0}, v{V_T1}")
    a.e(f"v_lshlrev_b32 v{V_T1}, 1, v{V_T1}")
    a.e(f"v_and_b32 v{V_T2}, 7, v1")
    a.e(f"v_xor_b32 v{V_T1}, v{V_T1}, v{V_T2}")
    a.e(f"v_lshlrev_b32 v{V_T1}, 4, v{V_T1}")
    a.e(f"v_add_u32 v{V_DW}, v{V_DW}, v{V_T1}")
    a.e(f"v_lshlrev_b32 v{V_L16}, 4, v1")
    a.e(f"s_mul_i32 s{S_H}, s{S_TB}, {28*1024}")
    a.e(f"s_add_u32 s{S_H}, s{S_H}, {WS_H:#x}")

    def dma_w(sig):
        p, s = divmod(sig, 28)
        a.e(f"s_add_u32 m0, s{S_LW}, {(sig % R) * 4096}")
        a.e(f"s_add_u32 s{S_T0}, s{S_WB}, {s*16*3584 + p*128}")
        a.vmem(f"buffer_load_dwordx4 v{V_DW}, s[{SRD_A}:{SRD_A+3}], s{S_T0} offen lds", ("W", sig))
    def load_h(kb):
        if kb % 4 == 0 and kb > 0:
            a.e(f"s_add_u32 s{S_H}, s{S_H}, 4096")
        a.vmem(f"buffer_load_dwordx4 a[{4*kb}:{4*kb+3}], v{V_L16}, s[{SRD_WS}:{SRD_WS+3}], s{S_H} offen offset:{(kb%4)*1024}", ("h", kb))
    for S in range(13):
        dma_w(2 * S); dma_w(2 * S + 1)
        load_h(2 * S); load_h(2 * S + 1)
    V_HI, V_L31 = V_T2, V_T3
    a.e(f"v_lshrrev_b32 v{V_HI}, 5, v1")
    a.e(f"v_and_b32 v{V_L31}, 31, v1")
    a.e(f"v_mul_u32_u24 v{V_T0}, 112, v{V_L31}")
    a.e(f"s_mul_i32 s{S_T0}, s{S_TB}, {32*112}")
    a.e(f"s_add_u32 s{S_T0}, s{S_T0}, {WS_ST:#x}")
    for i in range(7):
        a.vmem(f"buffer_load_dwordx4 v[{V_ST+4*i}:{V_ST+4*i+3}], v{V_T0}, s[{SRD_WS}:{SRD_WS+3}], s{S_T0} offen offset:{16*i}", "stats")
    a.e(f"v_lshlrev_b32 v{V_T0}, 4, v{V_L31}")
    a.e(f"v_mul_u32_u24 v{V_T1}, 7168, v{V_HI}")
    a.e(f"v_add_u32 v{V_T0}, v{V_T0}, v{V_T1}")
    a.e(f"s_lshl_b32 s{S_T0}, s{S_FB}, 9")
    a.e(f"s_add_u32 s{S_T0}, s{S_T0}, {WS_CS:#x}")
    a.e(f"s_mov_b32 m0, {CS_LDS}")
    a.e("s_nop 0")
    a.vmem(f"buffer_load_dwordx4 v{V_T0}, s[{SRD_WS}:{SRD_WS+3}], s{S_T0} offen lds", "cs")
    a.e(f"v_and_b32 v{V_T0}, 15, v1")
    a.e(f"v_lshrrev_b32 v{V_T0}, 2, v{V_T0}")
    a.e(f"v_lshlrev_b32 v{V_T1}, 3, v{V_HI}")
    a.e(f"v_add_u32 v{V_T1}, v{V_T1}, v{V_T0}")
    a.e(f"v_lshlrev_b32 v{V_A}, 7, v{V_T1}")
    a.e(f"v_bfe_u32 v{V_T1}, v1, 4, 1")
    a.e(f"v_lshlrev_b32 v{V_CS}, 11, v{V_T1}")
    a.e(f"v_add_u32 v{V_A}, v{V_A}, v{V_CS}")
    a.e(f"v_lshlrev_b32 v{V_T1}, 1, v{V_T1}")
    a.e(f"v_lshrrev_b32 v{V_T0}, 1, v{V_T0}")
    a.e(f"v_or_b32 v{V_T1}, v{V_T1}, v{V_T0}")
    a.e(f"v_lshlrev_b32 v{V_T1}, 5, v{V_T1}")
    a.e(f"v_add_u32 v{V_A}, v{V_A}, v{V_T1}")
    a.e(f"v_and_b32 v{V_T0}, 3, v1")
    a.e(f"v_lshlrev_b32 v{V_T0}, 3, v{V_T0}")
    a.e(f"v_add_u32 v{V_A}, v{V_A}, v{V_T0}")
    for b in range(1, 4):
        a.e(f"v_xor_b32 v{V_A+b}, {b*32}, v{V_A}")
    for b in range(4):
        a.e(f"v_add_u32 v{V_A+4+b}, 0x10000, v{V_A+b}")
    a.e(f"v_lshlrev_b32 v{V_CS}, 4, v{V_HI}")
    a.e(f"v_add_u32 v{V_CS}, {CS_LDS}, v{V_CS}")
    a.e(f"s_mul_i32 s{S_HH0}, s{S_TB}, 112")
    a.e(f"s_lshl_b32 s{S_T0}, s{S_FB}, 3")
    a.e(f"s_add_u32 s{S_HH0}, s{S_HH0}, s{S_T0}")
    a.e(f"s_lshl_b32 s{S_HH0}, s{S_HH0}, 10")
    a.e(f"s_add_u32 s{S_HH0}, s{S_HH0}, {WS_HH:#x}")
    a.e(f"s_add_u32 s{S_HH1}, s{S_HH0}, 4096")

    def frag_reads(n):
        S, i = divmod(n, 8)
        j, b = divmod(i, 4)
        sig = 2 * S + j
        pos = (sig % R) * 4096
        wdw, off = pos >> 16, pos & 0xFFFF
        fr = V_W + (n % 16) * 4
        a.lds(f"ds_read_b64_tr_b16 v[{fr}:{fr+1}], v{V_A+4*wdw+b} offset:{off}", ("fr", n))
        a.lds(f"ds_read_b64_tr_b16 v[{fr+2}:{fr+3}], v{V_A+4*wdw+b} offset:{off+512}", ("fr", n))

    fill = Filler()
    def add_stats():
        fill.add(lambda: a.wait_vm("stats"))
        for i in range(1, 14):
            fill.add(lambda i=i: a.e(f"v_add_f32 v{V_ST}, v{V_ST}, v{V_ST+2*i}"))
            fill.add(lambda i=i: a.e(f"v_add_f32 v{V_ST+1}, v{V_ST+1}, v{V_ST+2*i+1}"))
        inv = 1.0 / 448
        fill.add(lambda: a.e(f"v_mul_f32 v{V_NM}, {fbits(-inv):#x}, v{V_ST}"))
        fill.add(lambda: a.e(f"v_mul_f32 v{V_ST+1}, {fbits(inv):#x}, v{V_ST+1}"))
        fill.add(lambda: a.e(f"v_fma_f32 v{V_IR2}, -v{V_NM}, v{V_NM}, v{V_ST+1}"))
        fill.add(lambda: a.e(f"v_max_f32 v{V_IR2}, 0, v{V_IR2}"))
        fill.add(lambda: a.e(f"v_add_f32 v{V_IR2}, {fbits(1e-5):#x}, v{V_IR2}"))
        fill.add(lambda: a.e(f"v_rsq_f32 v{V_RG}, v{V_IR2}"))
        fill.add(lambda: a.e("s_nop 0"))
        fill.add(lambda: a.e(f"v_mul_f32 v{V_RG}, {fbits(-LOG2E):#x}, v{V_RG}"))
    def cs_reads(p, b):
        for part, base in ((0, V_CSG), (1, V_CSU)):
            for q in range(2):
                off = part * 512 + (64 * p + 16 * b + 8 * q) * 4
                fill.add(lambda base=base, q=q, off=off: a.lds(f"ds_read_b128 v[{base+4*q}:{base+4*q+3}], v{V_CS} offset:{off}", ("cs", p, b)))
    def add_epilogue(p, b, nxt):
        ac = ACC[p] + 16 * b
        fill.add(lambda: a.wait_lg(("cs", p, b)))
        for r in range(8):
            fill.add(lambda r=r: a.e(f"v_fmac_f32 v{ac+r}, v{V_NM}, v{V_CSG+r}"))
        for r in range(8):
            fill.add(lambda r=r: a.e(f"v_fmac_f32 v{ac+8+r}, v{V_NM}, v{V_CSU+r}"))
        if nxt is not None:
            cs_reads(*nxt)
        for r in range(8):
            fill.add(lambda r=r: a.e(f"v_mul_f32 v{V_T+r}, v{V_RG}, v{ac+r}"))
        for r in range(8):
            fill.add(lambda r=r: a.e(f"v_exp_f32 v{V_T+r}, v{V_T+r}"))
        for r in range(8):
            fill.add(lambda r=r: a.e(f"v_mul_f32 v{ac+r}, v{ac+r}, v{ac+8+r}"))
        for r in range(8):
            fill.add(lambda r=r: a.e(f"v_fma_f32 v{V_T+r}, v{V_T+r}, v{V_IR2}, v{V_IR2}"))
        for r in range(8):
            fill.add(lambda r=r: a.e(f"v_rcp_f32 v{V_T+r}, v{V_T+r}"))
        for r in range(8):
            fill.add(lambda r=r: a.e(f"v_mul_f32 v{ac+r}, v{ac+r}, v{V_T+r}"))
        for k in range(4):
            fill.add(lambda k=k: a.e(f"v_cvt_pk_bf16_f32 v{V_D+k}, v{ac+2*k}, v{ac+2*k+1}"))
        fill.add(lambda: a.e("s_nop 1"))
        fill.add(lambda: a.e(f"v_permlane32_swap_b32 v{V_D}, v{V_D+2}"))
        fill.add(lambda: a.e(f"v_permlane32_swap_b32 v{V_D+1}, v{V_D+3}"))
        sh = S_HH0 if p == 0 else S_HH1
        fill.add(lambda: a.vmem(f"buffer_store_dwordx4 v[{V_D}:{V_D+3}], v{V_L16}, s[{SRD_WS}:{SRD_WS+3}], s{sh} offen offset:{b*1024}", "st"))
        fill.add(lambda: a.e("s_nop 1"))

    a.wait_vm([("W", 0), ("W", 1)])
    a.e("s_barrier")
    for n in range(7):
        frag_reads(n)
    NM = 224
    for n in range(NM):
        S, i = divmod(n, 8)
        j, b = divmod(i, 4)
        p = S // 14
        kb = (2 * S + j) % 28
        if i == 0:
            if S + 1 < 28:
                tags = [("W", 2 * S + 2), ("W", 2 * S + 3)]
                if S + 1 < 14:
                    tags += [("h", 2 * S + 2), ("h", 2 * S + 3)]
                if S == 0:
                    tags += [("h", 0), ("h", 1)]
                a.wait_vm(tags)
                a.e("s_barrier")
            if 2 * S + 26 < 56:
                dma_w(2 * S + 26); dma_w(2 * S + 27)
            if S == 0:
                load_h(26); load_h(27)
            if S == 8:
                add_stats()
            if S == 13:
                a.wait_vm("cs")
                cs_reads(0, 0)
            if S == 14:
                for bb in range(4):
                    add_epilogue(0, bb, (0, bb + 1) if bb < 3 else (1, 0))
        a.wait_lg(("fr", n))
        fr = V_W + (n % 16) * 4
        ac = ACC[p] + 16 * b
        first = (S % 14 == 0 and j == 0)
        csrc = "0" if first else f"v[{ac}:{ac+15}]"
        a.e(f"v_mfma_f32_32x32x16_bf16 v[{ac}:{ac+15}], v[{fr}:{fr+3}], a[{4*kb}:{4*kb+3}], {csrc}")
        if n + 7 < NM:
            frag_reads(n + 7)
        fill.drain(3)
    fill.drain_all()
    a.e("s_nop 15")
    for bb in range(4):
        add_epilogue(1, bb, (1, bb + 1) if bb < 3 else None)
    fill.drain_all()

def phase1(a):
    S_RB, S_PAIR, S_T0, S_T1, S_R0 = 47, 48, 49, 50, 51
    S_WG, S_LW, S_XM, S_XH, S_LXM, S_LXH = 52, 53, 54, 55, 56, 57
    XT, WR, STATS, QKV = 0, 71680, 158720, 0
    TS = 400
    V_DW = 2
    V_DX = 5
    V_T0, V_T1, V_T2, V_T3 = 6, 7, 8, 9
    V_X = 10
    V_WA, V_WA2 = 20, 21
    V_J, V_G = 22, 23
    V_S0, V_Q0, V_S1, V_Q1, V_ONE = 24, 25, 26, 27, 28
    V_TB = 29
    FRW = 36
    FRX = 60
    ACC = 100
    a.e(f"s_lshr_b32 s{S_T0}, s{S_IDX}, 3")
    a.e(f"s_lshl_b32 s{S_RB}, s{S_XCD}, 2")
    a.e(f"s_add_u32 s{S_RB}, s{S_RB}, s{S_T0}")
    a.e(f"s_and_b32 s{S_PAIR}, s{S_IDX}, 7")
    a.e(f"s_lshl_b32 s{S_R0}, s{S_RB}, 6")
    srd(a, SRD_A, S_WQKV, WQKV_BYTES)
    srd(a, SRD_B, S_X, X_BYTES)
    a.e(f"s_mul_i32 s{S_T0}, s{S_WAVE}, 192")
    for e in range(3):
        a.e(f"v_add_u32 v{V_T0}, s{S_T0}, v1")
        if e:
            a.e(f"v_add_u32 v{V_T0}, {64*e}, v{V_T0}")
        a.e(f"v_mul_u32_u24 v{V_T1}, 2731, v{V_T0}")
        a.e(f"v_lshrrev_b32 v{V_T1}, 16, v{V_T1}")
        a.e(f"v_mul_u32_u24 v{V_T2}, 24, v{V_T1}")
        a.e(f"v_sub_u32 v{V_T0}, v{V_T0}, v{V_T2}")
        a.e(f"v_mul_u32_u24 v{V_DW+e}, 2688, v{V_T1}")
        a.e(f"v_lshrrev_b32 v{V_T2}, 3, v{V_T0}")
        a.e(f"v_mul_u32_u24 v{V_T2}, 896, v{V_T2}")
        a.e(f"v_add_u32 v{V_DW+e}, v{V_DW+e}, v{V_T2}")
        a.e(f"v_bfe_u32 v{V_T2}, v{V_T1}, 1, 1")
        a.e(f"v_bfe_u32 v{V_T3}, v{V_T1}, 3, 1")
        a.e(f"v_lshlrev_b32 v{V_T3}, 1, v{V_T3}")
        a.e(f"v_or_b32 v{V_T2}, v{V_T2}, v{V_T3}")
        a.e(f"v_lshlrev_b32 v{V_T2}, 1, v{V_T2}")
        a.e(f"v_and_b32 v{V_T0}, 7, v{V_T0}")
        a.e(f"v_xor_b32 v{V_T0}, v{V_T0}, v{V_T2}")
        a.e(f"v_lshlrev_b32 v{V_T0}, 4, v{V_T0}")
        a.e(f"v_add_u32 v{V_DW+e}, v{V_DW+e}, v{V_T0}")
    a.e(f"s_mul_i32 s{S_WG}, s{S_PAIR}, 112")
    a.e(f"s_mul_i32 s{S_LW}, s{S_WAVE}, 3072")
    a.e(f"s_add_u32 s{S_LW}, s{S_LW}, {WR}")
    a.e(f"v_lshrrev_b32 v{V_T0}, 3, v1")
    a.e(f"v_and_b32 v{V_T1}, 7, v1")
    a.e(f"v_xor_b32 v{V_T1}, v{V_T1}, v{V_T0}")
    a.e(f"v_lshlrev_b32 v{V_T1}, 4, v{V_T1}")
    a.e(f"v_mul_u32_u24 v{V_DX}, 896, v{V_T0}")
    a.e(f"v_add_u32 v{V_DX}, v{V_DX}, v{V_T1}")
    a.e(f"s_lshl_b32 s{S_T0}, s{S_WAVE}, 4")
    a.e(f"s_add_u32 s{S_T0}, s{S_T0}, s{S_R0}")
    a.e(f"s_mul_i32 s{S_XM}, s{S_T0}, 896")
    a.e(f"s_lshl_b32 s{S_LXM}, s{S_WAVE}, 11")
    a.e(f"s_add_u32 s{S_LXM}, s{S_LXM}, {XT + 2048}")
    a.e(f"s_max_u32 s{S_T0}, s{S_R0}, 16")
    a.e(f"s_sub_u32 s{S_T0}, s{S_T0}, 16")
    a.e(f"s_and_b32 s{S_T1}, s{S_WAVE}, 1")
    a.e(f"s_lshl_b32 s{S_LXH}, s{S_T1}, 10")
    a.e(f"s_lshl_b32 s{S_T1}, s{S_T1}, 3")
    a.e(f"s_add_u32 s{S_T0}, s{S_T0}, s{S_T1}")
    a.e(f"s_mul_i32 s{S_XH}, s{S_T0}, 896")
    a.e(f"s_lshr_b32 s{S_T1}, s{S_WAVE}, 1")
    a.e(f"s_lshl_b32 s58, s{S_T1}, 7")
    a.e(f"s_mul_i32 s59, s{S_T1}, 10240")

    def dma_w(s):
        for e in range(3):
            a.e(f"s_add_u32 m0, s{S_LW}, {(s % 7) * 12288 + e * 1024}")
            a.e(f"s_add_u32 s{S_T0}, s{S_WG}, {s*32*2688}")
            a.vmem(f"buffer_load_dwordx4 v{V_DW+e}, s[{SRD_A}:{SRD_A+3}], s{S_T0} offen lds", ("W", s))
    def dma_x(cp):
        for c in ([2 * cp, 2 * cp + 1] if cp < 3 else [6]):
            for e in range(2):
                a.e(f"s_add_u32 m0, s{S_LXM}, {c*10240 + e*1024}")
                a.e(f"s_add_u32 s{S_T0}, s{S_XM}, {c*128 + e*8*896}")
                a.vmem(f"buffer_load_dwordx4 v{V_DX}, s[{SRD_B}:{SRD_B+3}], s{S_T0} offen lds", ("X", cp))
        if cp < 3:
            a.e(f"s_add_u32 s{S_T1}, s{S_LXH}, s59")
            a.e(f"s_add_u32 m0, s{S_T1}, {2*cp*10240 + XT}")
            a.e(f"s_add_u32 s{S_T0}, s{S_XH}, s58")
            a.e(f"s_add_u32 s{S_T0}, s{S_T0}, {2*cp*128}")
        else:
            a.e(f"s_add_u32 m0, s{S_LXH}, {6*10240 + XT}")
            a.e(f"s_add_u32 s{S_T0}, s{S_XH}, {6*128}")
        a.vmem(f"buffer_load_dwordx4 v{V_DX}, s[{SRD_B}:{SRD_B+3}], s{S_T0} offen lds", ("X", cp))
    dma_x(0); dma_w(0); dma_w(1); dma_w(2); dma_w(3); dma_x(1); dma_w(4); dma_w(5); dma_w(6); dma_x(2); dma_x(3)

    a.e(f"v_and_b32 v{V_J}, 15, v1")
    a.e(f"v_lshrrev_b32 v{V_G}, 4, v1")
    a.e(f"v_and_b32 v{V_T0}, 7, v{V_J}")
    a.e(f"v_xor_b32 v{V_T0}, v{V_T0}, v{V_G}")
    a.e(f"v_lshlrev_b32 v{V_T0}, 4, v{V_T0}")
    a.e(f"v_lshlrev_b32 v{V_T1}, 7, v{V_J}")
    a.e(f"v_add_u32 v{V_T0}, v{V_T0}, v{V_T1}")
    for i in range(5):
        if i == 0:
            a.e(f"v_mov_b32 v{V_X}, v{V_T0}")
            a.e(f"v_mov_b32 v{V_TB}, 0")
        else:
            a.e(f"s_add_u32 s{S_T0}, s{S_WAVE}, {i-1}")
            a.e(f"s_and_b32 s{S_T0}, s{S_T0}, 3")
            a.e(f"s_add_u32 s{S_T0}, s{S_T0}, 1")
            a.e(f"s_lshl_b32 s{S_T1}, s{S_T0}, 11")
            a.e(f"v_add_u32 v{V_X+i}, s{S_T1}, v{V_T0}")
            a.e(f"s_lshl_b32 s{S_T1}, s{S_T0}, 4")
            a.e(f"v_mov_b32 v{V_TB+i}, s{S_T1}")
        a.e(f"v_xor_b32 v{V_X+5+i}, 64, v{V_X+i}")
    a.e(f"v_lshrrev_b32 v{V_T0}, 2, v{V_J}")
    a.e(f"v_lshlrev_b32 v{V_T1}, 3, v{V_G}")
    a.e(f"v_add_u32 v{V_T1}, v{V_T1}, v{V_T0}")
    a.e(f"v_mul_u32_u24 v{V_WA}, 384, v{V_T1}")
    a.e(f"v_lshrrev_b32 v{V_T0}, 1, v{V_T0}")
    a.e(f"v_and_b32 v{V_T1}, 1, v{V_G}")
    a.e(f"v_lshlrev_b32 v{V_T1}, 1, v{V_T1}")
    a.e(f"v_or_b32 v{V_T0}, v{V_T0}, v{V_T1}")
    a.e(f"v_xor_b32 v{V_T0}, s{S_WAVE}, v{V_T0}")
    a.e(f"v_lshlrev_b32 v{V_T0}, 5, v{V_T0}")
    a.e(f"v_add_u32 v{V_WA}, v{V_WA}, v{V_T0}")
    a.e(f"v_and_b32 v{V_T0}, 3, v1")
    a.e(f"v_lshlrev_b32 v{V_T0}, 3, v{V_T0}")
    a.e(f"v_add_u32 v{V_WA}, v{V_WA}, v{V_T0}")
    a.e(f"v_add_u32 v{V_WA}, {WR}, v{V_WA}")
    a.e(f"v_add_u32 v{V_WA2}, {5*12288}, v{V_WA}")
    for r in (V_S0, V_Q0, V_S1, V_Q1):
        a.e(f"v_mov_b32 v{r}, 0")
    a.e(f"v_mov_b32 v{V_ONE}, 0x3f803f80")
    a.e(f"v_cmp_eq_u32 s[60:61], 0, v{V_J}")

    def reads(s):
        out = []
        buf = s & 1
        rho = s % 7
        base, off0 = (V_WA, rho * 12288) if rho < 5 else (V_WA2, (rho - 5) * 12288)
        for P in range(3):
            fr = FRW + buf * 12 + P * 4
            out.append(lambda fr=fr, P=P: a.lds(f"ds_read_b64_tr_b16 v[{fr}:{fr+1}], v{base} offset:{off0 + P*128}", ("fr", s)))
            out.append(lambda fr=fr, P=P: a.lds(f"ds_read_b64_tr_b16 v[{fr+2}:{fr+3}], v{base} offset:{off0 + P*128 + 1536}", ("fr", s)))
        c, half = s >> 1, s & 1
        for i in range(5):
            fr = FRX + buf * 20 + i * 4
            out.append(lambda fr=fr, i=i: a.lds(f"ds_read_b128 v[{fr}:{fr+3}], v{V_X+5*half+i} offset:{c*10240}", ("fr", s)))
        return out

    a.wait_vm([("W", 0), ("X", 0)])
    a.e("s_barrier")
    for f in reads(0):
        f()
    for s in range(14):
        buf = s & 1
        if s + 1 < 14:
            a.wait_vm([("W", s + 1), ("X", (s + 1) >> 2)])
            a.e("s_barrier")
            if s >= 1 and s + 6 < 14:
                dma_w(s + 6)
        a.wait_lg(("fr", s))
        fill = Filler()
        fx0 = FRX + buf * 20
        for k in range(4):
            a.e(f"v_cndmask_b32 v{fx0+k}, v{fx0+k}, v{V_ONE}, s[60:61]")
        if s + 1 < 14:
            for f in reads(s + 1):
                fill.add(f)
        for k in range(4):
            fill.add(lambda k=k: a.e(f"v_dot2c_f32_bf16 v{V_S1}, v{fx0+4+k}, v{V_ONE}"))
            fill.add(lambda k=k: a.e(f"v_dot2c_f32_bf16 v{V_Q1}, v{fx0+4+k}, v{fx0+4+k}"))
        for k in range(4):
            fill.add(lambda k=k: a.e(f"v_dot2c_f32_bf16 v{V_S0}, v{fx0+k}, v{V_ONE}"))
            fill.add(lambda k=k: a.e(f"v_dot2c_f32_bf16 v{V_Q0}, v{fx0+k}, v{fx0+k}"))
        order = [(i, P) for i in (1, 2, 3, 4, 0) for P in range(3)]
        for (i, P) in order:
            ac = ACC + (i * 3 + P) * 4
            fw = FRW + buf * 12 + P * 4
            fx = FRX + buf * 20 + i * 4
            csrc = "0" if s == 0 else f"v[{ac}:{ac+3}]"
            a.e(f"v_mfma_f32_16x16x32_bf16 v[{ac}:{ac+3}], v[{fw}:{fw+3}], v[{fx}:{fx+3}], {csrc}")
            fill.drain(2)
        fill.drain_all()
    V_U = 160
    a.e("s_nop 3")
    for k, r in enumerate((V_S0, V_Q0, V_S1, V_Q1)):
        a.e(f"v_mov_b32 v{V_U+k}, v{r}")
    a.e("s_nop 1")
    for k, r in enumerate((V_S0, V_Q0, V_S1, V_Q1)):
        a.e(f"v_permlane16_swap_b32 v{V_U+k}, v{r}")
    a.e("s_nop 1")
    for k, r in enumerate((V_S0, V_Q0, V_S1, V_Q1)):
        a.e(f"v_add_f32 v{r}, v{r}, v{V_U+k}")
    for k, r in enumerate((V_S0, V_Q0, V_S1, V_Q1)):
        a.e(f"v_mov_b32 v{V_U+k}, v{r}")
    a.e("s_nop 1")
    for k, r in enumerate((V_S0, V_Q0, V_S1, V_Q1)):
        a.e(f"v_permlane32_swap_b32 v{V_U+k}, v{r}")
    a.e("s_nop 1")
    for k, r in enumerate((V_S0, V_Q0, V_S1, V_Q1)):
        a.e(f"v_add_f32 v{r}, v{r}, v{V_U+k}")
    V_RS = 164
    inv = 1.0 / 448
    for (i, rs, rq) in ((0, V_S0, V_Q0), (1, V_S1, V_Q1)):
        a.e(f"v_mul_f32 v{rs}, {fbits(inv):#x}, v{rs}")
        a.e(f"v_mul_f32 v{rq}, {fbits(inv):#x}, v{rq}")
        a.e(f"v_fma_f32 v{rq}, -v{rs}, v{rs}, v{rq}")
        a.e(f"v_max_f32 v{rq}, 0, v{rq}")
        a.e(f"v_add_f32 v{rq}, {fbits(1e-5):#x}, v{rq}")
        a.e(f"v_rsq_f32 v{V_RS+2*i}, v{rq}")
        a.e("s_nop 0")
        a.e(f"v_mul_f32 v{V_RS+2*i+1}, v{rs}, v{V_RS+2*i}")
        a.e(f"v_sub_f32 v{V_RS+2*i+1}, 0, v{V_RS+2*i+1}")
    a.e(f"v_add_u32 v{V_T0}, v{V_TB+1}, v{V_J}")
    a.e(f"v_lshlrev_b32 v{V_T0}, 3, v{V_T0}")
    a.e(f"v_add_u32 v{V_T0}, {STATS}, v{V_T0}")
    a.lds(f"ds_write_b64 v{V_T0}, v[{V_RS+2}:{V_RS+3}]")
    a.wait_lg_all()
    a.e("s_barrier")
    for i in (2, 3, 4):
        a.e(f"v_add_u32 v{V_T0}, v{V_TB+i}, v{V_J}")
        a.e(f"v_lshlrev_b32 v{V_T0}, 3, v{V_T0}")
        a.e(f"v_add_u32 v{V_T0}, {STATS}, v{V_T0}")
        a.lds(f"ds_read_b64 v[{V_RS+2*i}:{V_RS+2*i+1}], v{V_T0}")
    V_CS = 176
    for P in range(3):
        for r in range(4):
            a.e(f"v_mov_b32_dpp v{V_CS+4*P+r}, v{ACC+P*4+r} row_newbcast:0 row_mask:0xf bank_mask:0xf")
    a.e(f"s_lshl_b32 s{S_T0}, s{S_WAVE}, 2")
    a.e(f"v_add_u32 v{V_T1}, s{S_T0}, v{V_G}")
    a.e(f"v_lshlrev_b32 v{V_T2}, 3, v{V_T1}")
    a.e(f"v_cmp_le_u32 vcc, 7, v{V_T1}")
    a.e(f"v_add_u32 v{V_T3}, 8, v{V_T2}")
    a.e(f"v_cndmask_b32 v{V_T2}, v{V_T2}, v{V_T3}, vcc")
    a.e(f"v_cmp_eq_u32 vcc, 14, v{V_T1}")
    a.e(f"v_mov_b32 v{V_T3}, 56")
    a.e(f"v_cndmask_b32 v{V_T2}, v{V_T2}, v{V_T3}, vcc")
    a.e(f"v_cmp_eq_u32 vcc, 15, v{V_T1}")
    a.e(f"v_mov_b32 v{V_T3}, 120")
    a.e(f"v_cndmask_b32 v{V_T2}, v{V_T2}, v{V_T3}, vcc")
    a.e(f"v_cmp_gt_u32 vcc, 14, v{V_T1}")
    a.e(f"v_mov_b32 v{V_T3}, 0")
    a.e(f"v_cndmask_b32 v{V_T3}, v{V_T3}, 1.0, vcc") if False else None
    a.e(f"v_mov_b32 v{V_T0}, 1.0")
    a.e(f"v_cndmask_b32 v{V_T3}, v{V_T3}, v{V_T0}, vcc")
    a.wait_lg_all()
    for i in range(5):
        a.e(f"v_mul_f32 v{V_RS+2*i}, v{V_RS+2*i}, v{V_T3}")
        a.e(f"v_mul_f32 v{V_RS+2*i+1}, v{V_RS+2*i+1}, v{V_T3}")
    V_WAD = 188
    for i in range(5):
        a.e(f"v_add_u32 v{V_T0}, v{V_TB+i}, v{V_J}")
        a.e(f"v_mul_u32_u24 v{V_WAD+i}, {TS}, v{V_T0}")
        a.e(f"v_add_u32 v{V_WAD+i}, v{V_WAD+i}, v{V_T2}")
    V_P = 194
    cnt = 0
    for i in range(5):
        for P in range(3):
            if i == 0 and P == 0:
                continue
            ac = ACC + (i * 3 + P) * 4
            for r in range(4):
                a.e(f"v_mul_f32 v{ac+r}, v{ac+r}, v{V_RS+2*i}")
            for r in range(4):
                a.e(f"v_fmac_f32 v{ac+r}, v{V_RS+2*i+1}, v{V_CS+4*P+r}")
            pk = V_P + 2 * (cnt & 3)
            cnt += 1
            a.e(f"v_cvt_pk_bf16_f32 v{pk}, v{ac}, v{ac+1}")
            a.e(f"v_cvt_pk_bf16_f32 v{pk+1}, v{ac+2}, v{ac+3}")
            a.lds(f"ds_write_b64 v{V_WAD+i}, v[{pk}:{pk+1}] offset:{QKV + P*128}")
    a.wait_lg_all()
    a.e("s_barrier")
    S_HD, S_PAR = 58, 59
    a.e(f"s_and_b32 s{S_HD}, s{S_WAVE}, 1")
    a.e(f"s_lshr_b32 s{S_PAR}, s{S_WAVE}, 1")
    V_QA, V_KA, V_KB, V_VA, V_VB = 2, 3, 4, 5, 6
    V_KB1, V_VB1 = 7, 8
    a.e(f"s_lshl_b32 s{S_T0}, s{S_HD}, 6")
    a.e(f"s_mul_i32 s{S_T1}, s{S_PAR}, {TS}")
    a.e(f"s_add_u32 s{S_T0}, s{S_T0}, s{S_T1}")
    a.e(f"v_mul_u32_u24 v{V_U}, {2*TS}, v{V_J}")
    a.e(f"v_lshlrev_b32 v{V_U+1}, 4, v{V_G}")
    a.e(f"v_add_u32 v{V_U}, v{V_U}, v{V_U+1}")
    a.e(f"v_add_u32 v{V_U}, s{S_T0}, v{V_U}")
    a.e(f"v_add_u32 v{V_QA}, {QKV + 16*TS}, v{V_U}")
    a.e(f"v_add_u32 v{V_KA}, {QKV + 128}, v{V_U}")
    a.e(f"v_add_u32 v{V_KB}, {QKV + 128 + 32*TS}, v{V_U}")
    a.e(f"v_min_u32 v{V_U+2}, 7, v{V_J}")
    a.e(f"v_mul_u32_u24 v{V_U+2}, {2*TS}, v{V_U+2}")
    a.e(f"v_add_u32 v{V_U+2}, v{V_U+2}, v{V_U+1}")
    a.e(f"v_add_u32 v{V_U+2}, s{S_T0}, v{V_U+2}")
    a.e(f"v_add_u32 v{V_KB1}, {QKV + 128 + 64*TS}, v{V_U+2}")
    a.e(f"v_lshrrev_b32 v{V_U+3}, 2, v{V_J}")
    a.e(f"v_lshlrev_b32 v{V_U+4}, 2, v{V_G}")
    a.e(f"v_add_u32 v{V_U+3}, v{V_U+3}, v{V_U+4}")
    a.e(f"v_and_b32 v{V_U+4}, 3, v1")
    a.e(f"v_lshlrev_b32 v{V_U+4}, 3, v{V_U+4}")
    a.e(f"v_add_u32 v{V_U+4}, s{S_T0}, v{V_U+4}")
    a.e(f"v_mul_u32_u24 v{V_U+5}, {2*TS}, v{V_U+3}")
    a.e(f"v_add_u32 v{V_U+5}, v{V_U+5}, v{V_U+4}")
    a.e(f"v_add_u32 v{V_VA}, {QKV + 256}, v{V_U+5}")
    a.e(f"v_add_u32 v{V_VB}, {QKV + 256 + 32*TS}, v{V_U+5}")
    a.e(f"v_min_u32 v{V_U+3}, 7, v{V_U+3}")
    a.e(f"v_mul_u32_u24 v{V_U+5}, {2*TS}, v{V_U+3}")
    a.e(f"v_add_u32 v{V_U+5}, v{V_U+5}, v{V_U+4}")
    a.e(f"v_add_u32 v{V_VB1}, {QKV + 256 + 64*TS}, v{V_U+5}")
    V_BI = 36
    a.e(f"s_cmp_eq_u32 s{S_RB}, 0")
    a.e(f"s_cselect_b32 s{S_T1}, 8, 0")
    a.e(f"v_mov_b32 v{V_U+6}, 0xf149f2ca")
    a.e(f"v_mov_b32 v{V_U+7}, 0")
    for blk in range(2):
        for r in range(4):
            a.e(f"v_lshlrev_b32 v{V_U}, 2, v{V_G}")
            a.e(f"v_sub_u32 v{V_U}, v{V_U}, v{V_J}")
            a.e(f"v_add_u32 v{V_U}, {16*blk + r - 1 & 0xffffffff:#x}, v{V_U}") if (16*blk + r - 1) < 0 else a.e(f"v_add_u32 v{V_U}, {16*blk + r - 1}, v{V_U}")
            a.e(f"v_cmp_gt_u32 vcc, 8, v{V_U}")
            a.e("s_nop 1")
            a.e(f"v_cndmask_b32 v{V_BI+8+blk*4+r}, v{V_U+6}, v{V_U+7}, vcc")
            a.e(f"v_lshlrev_b32 v{V_U}, 2, v{V_G}")
            a.e(f"v_add_u32 v{V_U}, {16*blk + r}, v{V_U}")
            a.e(f"v_cmp_le_u32 vcc, s{S_T1}, v{V_U}")
            a.e("s_nop 1")
            a.e(f"v_cndmask_b32 v{V_BI+blk*4+r}, v{V_U+6}, v{V_BI+8+blk*4+r}, vcc")
    SC = (28 ** -0.5) * LOG2E
    a.e(f"s_mov_b32 s60, {fbits(SC):#x}")
    srd(a, SRD_C, S_WS, WS_SIZE)
    V_OA = 26
    a.e(f"s_lshl_b32 s{S_T0}, s{S_PAIR}, 1")
    a.e(f"s_add_u32 s{S_T0}, s{S_T0}, s{S_HD}")
    a.e(f"s_mul_i32 s{S_T0}, s{S_T0}, 28")
    for d in range(2):
        a.e(f"v_lshlrev_b32 v{V_U}, 2, v{V_G}")
        a.e(f"v_add_u32 v{V_U}, s{S_T0}, v{V_U}")
        if d:
            a.e(f"v_add_u32 v{V_U}, 16, v{V_U}")
        a.e(f"v_lshrrev_b32 v{V_U+1}, 4, v{V_U}")
        a.e(f"v_lshlrev_b32 v{V_OA+d}, 10, v{V_U+1}")
        a.e(f"v_bfe_u32 v{V_U+1}, v{V_U}, 3, 1")
        a.e(f"v_lshlrev_b32 v{V_U+1}, 9, v{V_U+1}")
        a.e(f"v_add_u32 v{V_OA+d}, v{V_OA+d}, v{V_U+1}")
        a.e(f"v_and_b32 v{V_U+1}, 7, v{V_U}")
        a.e(f"v_lshlrev_b32 v{V_U+1}, 1, v{V_U+1}")
        a.e(f"v_add_u32 v{V_OA+d}, v{V_OA+d}, v{V_U+1}")
        a.e(f"v_lshlrev_b32 v{V_U+1}, 5, v{V_J}")
        a.e(f"v_add_u32 v{V_OA+d}, v{V_OA+d}, v{V_U+1}")
    a.e(f"v_cmp_eq_u32 vcc, 3, v{V_G}")
    a.e(f"v_mov_b32 v{V_U}, 0x7fffffff")
    a.e("s_nop 0")
    a.e(f"v_cndmask_b32 v{V_OA+1}, v{V_OA+1}, v{V_U}, vcc")
    a.e(f"s_lshl_b32 s{S_T0}, s{S_RB}, 1")
    a.e(f"s_mul_i32 s{S_T0}, s{S_T0}, {28*1024}")
    a.e(f"s_lshl_b32 s{S_T1}, s{S_PAR}, 4")
    a.e(f"s_add_u32 s{S_T0}, s{S_T0}, s{S_T1}")
    a.e(f"s_add_u32 s61, s{S_T0}, {WS_O:#x}")
    a.e(f"s_add_u32 s62, s61, {28*1024}")
    for b in range(2):
        base = 200 + b * 28 if False else (100 + b * 40)
        Q, KA, KB, V0, V1, SS, OO = base, base + 4, base + 8, base + 12, base + 16, base + 20, base + 28
        off = b * 32 * TS
        a.lds(f"ds_read_b128 v[{Q}:{Q+3}], v{V_QA} offset:{off}", ("q", b))
        a.lds(f"ds_read_b128 v[{KA}:{KA+3}], v{V_KA} offset:{off}", ("q", b))
        if b == 0:
            a.lds(f"ds_read_b128 v[{KB}:{KB+3}], v{V_KB}", ("q", b))
        else:
            a.lds(f"ds_read_b128 v[{KB}:{KB+3}], v{V_KB1}", ("q", b))
        for d, VV in ((0, V0), (1, V1)):
            a.lds(f"ds_read_b64_tr_b16 v[{VV}:{VV+1}], v{V_VA} offset:{off + 32*d}", ("v", b))
            if b == 0:
                a.lds(f"ds_read_b64_tr_b16 v[{VV+2}:{VV+3}], v{V_VB} offset:{32*d}", ("v", b))
            else:
                a.lds(f"ds_read_b64_tr_b16 v[{VV+2}:{VV+3}], v{V_VB1} offset:{32*d}", ("v", b))
    for b in range(2):
        base = 100 + b * 40
        Q, KA, KB, V0, V1, SS, OO = base, base + 4, base + 8, base + 12, base + 16, base + 20, base + 28
        a.wait_lg(("q", b))
        a.e(f"v_mfma_f32_16x16x32_bf16 v[{SS}:{SS+3}], v[{KA}:{KA+3}], v[{Q}:{Q+3}], 0")
        a.e(f"v_mfma_f32_16x16x32_bf16 v[{SS+4}:{SS+7}], v[{KB}:{KB+3}], v[{Q}:{Q+3}], 0")
    a.e("s_nop 7")
    T = 180
    for b in range(2):
        base = 100 + b * 40
        SS = base + 20
        for k in range(8):
            a.e(f"v_fma_f32 v{SS+k}, v{SS+k}, s60, v{V_BI+8*b+k}")
    for b in range(2):
        base = 100 + b * 40
        SS = base + 20
        M = T + 4 * b
        a.e(f"v_max3_f32 v{M}, v{SS}, v{SS+1}, v{SS+2}")
        a.e(f"v_max3_f32 v{M+1}, v{SS+3}, v{SS+4}, v{SS+5}")
        a.e(f"v_max3_f32 v{M}, v{M}, v{SS+6}, v{SS+7}")
        a.e(f"v_max_f32 v{M}, v{M}, v{M+1}")
        a.e(f"v_mov_b32 v{M+1}, v{M}")
    a.e("s_nop 1")
    for b in range(2):
        M = T + 4 * b
        a.e(f"v_permlane16_swap_b32 v{M}, v{M+1}")
    a.e("s_nop 1")
    for b in range(2):
        M = T + 4 * b
        a.e(f"v_max_f32 v{M}, v{M}, v{M+1}")
        a.e(f"v_mov_b32 v{M+1}, v{M}")
    a.e("s_nop 1")
    for b in range(2):
        M = T + 4 * b
        a.e(f"v_permlane32_swap_b32 v{M}, v{M+1}")
    a.e("s_nop 1")
    for b in range(2):
        M = T + 4 * b
        a.e(f"v_max_f32 v{M}, v{M}, v{M+1}")
    for b in range(2):
        SS = 100 + b * 40 + 20
        M = T + 4 * b
        for k in range(8):
            a.e(f"v_sub_f32 v{SS+k}, v{SS+k}, v{M}")
    for b in range(2):
        SS = 100 + b * 40 + 20
        for k in range(8):
            a.e(f"v_exp_f32 v{SS+k}, v{SS+k}")
    for b in range(2):
        SS = 100 + b * 40 + 20
        M = T + 4 * b
        a.e(f"v_add_f32 v{M+2}, v{SS}, v{SS+1}")
        a.e(f"v_add_f32 v{M+3}, v{SS+2}, v{SS+3}")
        a.e(f"v_add_f32 v{M+2}, v{M+2}, v{SS+4}")
        a.e(f"v_add_f32 v{M+3}, v{M+3}, v{SS+5}")
        a.e(f"v_add_f32 v{M+2}, v{M+2}, v{SS+6}")
        a.e(f"v_add_f32 v{M+3}, v{M+3}, v{SS+7}")
        a.e(f"v_add_f32 v{M+2}, v{M+2}, v{M+3}")
        a.e(f"v_mov_b32 v{M+3}, v{M+2}")
    a.e("s_nop 1")
    for b in range(2):
        M = T + 4 * b
        a.e(f"v_permlane16_swap_b32 v{M+2}, v{M+3}")
    a.e("s_nop 1")
    for b in range(2):
        M = T + 4 * b
        a.e(f"v_add_f32 v{M+2}, v{M+2}, v{M+3}")
        a.e(f"v_mov_b32 v{M+3}, v{M+2}")
    a.e("s_nop 1")
    for b in range(2):
        M = T + 4 * b
        a.e(f"v_permlane32_swap_b32 v{M+2}, v{M+3}")
    a.e("s_nop 1")
    for b in range(2):
        M = T + 4 * b
        a.e(f"v_add_f32 v{M+2}, v{M+2}, v{M+3}")
    for b in range(2):
        M = T + 4 * b
        a.e(f"v_rcp_f32 v{M+2}, v{M+2}")
    a.e("s_nop 0")
    for b in range(2):
        SS = 100 + b * 40 + 20
        M = T + 4 * b
        for k in range(8):
            a.e(f"v_mul_f32 v{SS+k}, v{SS+k}, v{M+2}")
    for b in range(2):
        base = 100 + b * 40
        SS = base + 20
        PP = base
        for k in range(4):
            a.e(f"v_cvt_pk_bf16_f32 v{PP+k}, v{SS+2*k}, v{SS+2*k+1}")
    a.e("s_nop 1")
    for b in range(2):
        base = 100 + b * 40
        V0, V1, OO = base + 12, base + 16, base + 28
        a.wait_lg(("v", b))
        a.e(f"v_mfma_f32_16x16x32_bf16 v[{OO}:{OO+3}], v[{V0}:{V0+3}], v[{base}:{base+3}], 0")
        a.e(f"v_mfma_f32_16x16x32_bf16 v[{OO+4}:{OO+7}], v[{V1}:{V1+3}], v[{base}:{base+3}], 0")
    a.e("s_nop 7")
    for b in range(2):
        base = 100 + b * 40
        OO = base + 28
        for d in range(2):
            pk = base + 4 + 2 * d
            a.e(f"v_cvt_pk_bf16_f32 v{pk}, v{OO+4*d}, v{OO+4*d+1}")
            a.e(f"v_cvt_pk_bf16_f32 v{pk+1}, v{OO+4*d+2}, v{OO+4*d+3}")
            a.vmem(f"buffer_store_dwordx2 v[{pk}:{pk+1}], v{V_OA+d}, s[{SRD_C}:{SRD_C+3}], s{61+b} offen", "st")
```

```python
import sys
from asmlib import *

from common import *

def prologue(a, nwg):
    a.e(f"s_cmp_ge_u32 s2, {nwg}")
    a.e(f"s_cbranch_scc1 {a.endlabel}")
    a.e("s_load_dwordx16 s[4:19], s[0:1], 0")
    a.e("s_load_dwordx4 s[20:23], s[0:1], 64")
    a.e("v_and_b32 v1, 63, v0")
    a.e("v_lshrrev_b32 v2, 6, v0")
    a.e(f"s_and_b32 s{S_XCD}, s2, 7")
    a.e(f"v_readfirstlane_b32 s{S_WAVE}, v2")
    a.e(f"s_lshr_b32 s{S_IDX}, s2, 3")
    a.e("s_waitcnt lgkmcnt(0)")
    srd(a, SRD_WS, S_WS, WS_SIZE)

def gemm64(a, mode):
    if mode == "wo":
        KB, nsl, R, wptr, wbytes, act = 28, 7, 7, S_WO, WO_BYTES, WS_O
    else:
        KB, nsl, R, wptr, wbytes, act = 112, 28, 9, S_W2, W2_BYTES, WS_HH
    S_RB, S_CT, S_T0, S_T1 = 47, 48, 49, 50
    S_G = 52
    S_L = 56
    S_GS = 57
    S_WF, S_WT = 58, 59
    div_small(a, S_T0, S_IDX, 7, None)
    a.e(f"s_mul_i32 s{S_T1}, s{S_T0}, 7")
    a.e(f"s_sub_u32 s{S_CT}, s{S_IDX}, s{S_T1}")
    a.e(f"s_lshl_b32 s{S_RB}, s{S_XCD}, 2")
    a.e(f"s_add_u32 s{S_RB}, s{S_RB}, s{S_T0}")
    a.e(f"s_and_b32 s{S_WF}, s{S_WAVE}, 1")
    a.e(f"s_lshr_b32 s{S_WT}, s{S_WAVE}, 1")
    a.e(f"s_cmp_lt_u32 s{S_WAVE}, 2")
    a.e(f"s_cselect_b32 s{SRD_A}, s{S_WS}, s{wptr}")
    a.e(f"s_cselect_b32 s{SRD_A+1}, s{S_WS+1}, s{wptr+1}")
    a.e(f"s_mov_b32 s{S_T1}, {wbytes:#x}")
    a.e(f"s_cselect_b32 s{SRD_A+2}, s{SRD_WS+2}, s{S_T1}")
    a.e(f"s_mov_b32 s{SRD_A+3}, {SRD3:#x}")
    a.e(f"s_lshl_b32 s{S_T0}, s{S_RB}, 1")
    a.e(f"s_add_u32 s{S_T0}, s{S_T0}, s{S_WAVE}")
    a.e(f"s_mul_i32 s{S_T0}, s{S_T0}, {KB*1024}")
    a.e(f"s_add_u32 s{S_T0}, s{S_T0}, {act:#x}")
    a.e(f"s_sub_u32 s{S_T1}, s{S_WAVE}, 2")
    a.e(f"s_mul_i32 s{S_T1}, s{S_T1}, {32*896}")
    a.e(f"s_lshl_b32 s{S_G}, s{S_CT}, 7")
    a.e(f"s_add_u32 s{S_T1}, s{S_T1}, s{S_G}")
    a.e(f"s_cmp_lt_u32 s{S_WAVE}, 2")
    a.e(f"s_cselect_b32 s{S_G}, s{S_T0}, s{S_T1}")
    a.e(f"s_cselect_b32 s{S_T0}, 0, {8*896-1024}")
    a.e(f"s_mov_b32 s{S_T1}, {64*896}")
    a.e(f"s_cselect_b32 s{S_GS}, 4096, s{S_T1}")
    a.e(f"s_add_u32 s{S_G+1}, s{S_G}, s{S_T0}")
    a.e(f"s_add_u32 s{S_G+2}, s{S_G+1}, s{S_T0}")
    a.e(f"s_add_u32 s{S_G+3}, s{S_G+2}, s{S_T0}")
    a.e(f"s_lshl_b32 s{S_L}, s{S_WAVE}, 12")
    V_DOFF, V_T0, V_T1, V_T2 = 2, 3, 4, 5
    a.e(f"v_lshrrev_b32 v{V_T0}, 3, v1")
    a.e(f"v_and_b32 v{V_T1}, 2, v{V_T0}")
    a.e(f"v_lshlrev_b32 v{V_T1}, 1, v{V_T1}")
    a.e(f"v_and_b32 v{V_T2}, 7, v1")
    a.e(f"v_xor_b32 v{V_T1}, v{V_T1}, v{V_T2}")
    a.e(f"v_lshlrev_b32 v{V_T1}, 4, v{V_T1}")
    a.e(f"v_mul_u32_u24 v{V_T0}, 896, v{V_T0}")
    a.e(f"v_add_u32 v{V_T0}, v{V_T0}, v{V_T1}")
    a.e(f"v_lshlrev_b32 v{V_DOFF}, 4, v1")
    a.e(f"s_cmp_lt_u32 s{S_WAVE}, 2")
    a.e(f"s_cselect_b64 vcc, -1, 0")
    a.e(f"v_cndmask_b32 v{V_DOFF}, v{V_T0}, v{V_DOFF}, vcc")
    V_RES = 8
    V_HI, V_L31 = 6, 7
    a.e(f"v_lshrrev_b32 v{V_HI}, 5, v1")
    a.e(f"v_and_b32 v{V_L31}, 31, v1")
    if mode == "wo":
        srd(a, SRD_B, S_X, X_BYTES)
        a.e(f"s_lshl_b32 s{S_T0}, s{S_RB}, 6")
        a.e(f"s_lshl_b32 s{S_T1}, s{S_WT}, 5")
        a.e(f"s_add_u32 s{S_T0}, s{S_T0}, s{S_T1}")
        a.e(f"s_mov_b32 s60, s{S_T0}")
        a.e(f"s_mul_i32 s{S_T0}, s{S_T0}, 896")
        a.e(f"s_lshl_b32 s{S_T1}, s{S_CT}, 7")
        a.e(f"s_add_u32 s{S_T0}, s{S_T0}, s{S_T1}")
        a.e(f"s_lshl_b32 s{S_T1}, s{S_WF}, 6")
        a.e(f"s_add_u32 s61, s{S_T0}, s{S_T1}")
        a.e(f"v_mul_u32_u24 v{V_T0}, 896, v{V_L31}")
        a.e(f"v_lshlrev_b32 v{V_T1}, 3, v{V_HI}")
        a.e(f"v_add_u32 v{V_T0}, v{V_T0}, v{V_T1}")
        for q in range(4):
            a.vmem(f"buffer_load_dwordx2 v[{V_RES+2*q}:{V_RES+2*q+1}], v{V_T0}, s[{SRD_B}:{SRD_B+3}], s61 offen offset:{16*q}", "res")
    else:
        a.e(f"s_lshl_b32 s{S_T0}, s{S_RB}, 1")
        a.e(f"s_add_u32 s{S_T0}, s{S_T0}, s{S_WT}")
        a.e(f"s_mul_i32 s{S_T0}, s{S_T0}, 28")
        a.e(f"s_lshl_b32 s{S_T1}, s{S_CT}, 2")
        a.e(f"s_add_u32 s{S_T0}, s{S_T0}, s{S_T1}")
        a.e(f"s_lshl_b32 s{S_T1}, s{S_WF}, 1")
        a.e(f"s_add_u32 s{S_T0}, s{S_T0}, s{S_T1}")
        a.e(f"s_lshl_b32 s{S_T0}, s{S_T0}, 10")
        a.e(f"s_add_u32 s62, s{S_T0}, {WS_H:#x}")
        a.e(f"v_lshlrev_b32 v{V_T0}, 4, v{V_L31}")
        a.e(f"v_lshlrev_b32 v{V_T1}, 3, v{V_HI}")
        a.e(f"v_add_u32 v{V_T0}, v{V_T0}, v{V_T1}")
        for q in range(4):
            a.vmem(f"buffer_load_dwordx2 v[{V_RES+2*q}:{V_RES+2*q+1}], v{V_T0}, s[{SRD_WS}:{SRD_WS+3}], s62 offen offset:{(q>>1)*1024+(q&1)*512}", "res")
        a.e(f"s_lshl_b32 s{S_T0}, s{S_RB}, 6")
        a.e(f"s_lshl_b32 s{S_T1}, s{S_WT}, 5")
        a.e(f"s_add_u32 s{S_T0}, s{S_T0}, s{S_T1}")
        a.e(f"s_mul_i32 s{S_T0}, s{S_T0}, 896")
        a.e(f"s_lshl_b32 s{S_T1}, s{S_CT}, 7")
        a.e(f"s_add_u32 s{S_T0}, s{S_T0}, s{S_T1}")
        a.e(f"s_lshl_b32 s{S_T1}, s{S_WF}, 6")
        a.e(f"s_add_u32 s61, s{S_T0}, s{S_T1}")
        srd(a, SRD_B, S_OUT, OUT_BYTES)

    def dma_slot(t):
        pos = t % R
        a.e(f"s_add_u32 m0, s{S_L}, {pos*16384}")
        a.e("s_nop 0")
        for j in range(4):
            a.vmem(f"buffer_load_dwordx4 v{V_DOFF}, s[{SRD_A}:{SRD_A+3}], s{S_G+j} offen offset:{j*1024} lds", ("slot", t))
        for j in range(4):
            a.e(f"s_add_u32 s{S_G+j}, s{S_G+j}, s{S_GS}")
    for t in range(min(R, nsl)):
        dma_slot(t)
    V_B, V_A = 16, 19
    a.e(f"s_lshl_b32 s{S_T0}, s{S_WT}, 12")
    a.e(f"v_lshlrev_b32 v{V_B}, 4, v1")
    a.e(f"v_add_u32 v{V_B}, s{S_T0}, v{V_B}")
    a.e(f"v_and_b32 v{V_T0}, 15, v1")
    a.e(f"v_lshrrev_b32 v{V_T0}, 2, v{V_T0}")
    a.e(f"v_lshlrev_b32 v{V_T1}, 3, v{V_HI}")
    a.e(f"v_add_u32 v{V_T1}, v{V_T1}, v{V_T0}")
    a.e(f"v_lshlrev_b32 v{V_A}, 7, v{V_T1}")
    a.e(f"v_bfe_u32 v{V_T1}, v1, 4, 1")
    a.e(f"s_lshl_b32 s{S_T0}, s{S_WF}, 1")
    a.e(f"v_add_u32 v{V_T1}, s{S_T0}, v{V_T1}")
    a.e(f"v_and_b32 v{V_T0}, 2, v{V_T0}")
    a.e(f"v_xor_b32 v{V_T1}, v{V_T1}, v{V_T0}")
    a.e(f"v_lshlrev_b32 v{V_T1}, 5, v{V_T1}")
    a.e(f"v_add_u32 v{V_A}, v{V_A}, v{V_T1}")
    a.e(f"v_and_b32 v{V_T0}, 3, v1")
    a.e(f"v_lshlrev_b32 v{V_T0}, 3, v{V_T0}")
    a.e(f"v_add_u32 v{V_A}, v{V_A}, v{V_T0}")
    a.e(f"v_add_u32 v{V_A}, 8192, v{V_A}")
    for wdw in (1, 2):
        a.e(f"v_add_u32 v{V_B+wdw}, {wdw*65536:#x}, v{V_B}")
        a.e(f"v_add_u32 v{V_A+wdw}, {wdw*65536:#x}, v{V_A}")
    ACC = 32
    FR = 48
    for i in range(16):
        a.e(f"v_mov_b32 v{ACC+i}, 0")
    def reads(t, j):
        base = (t % R) * 16384
        wdw, off = base >> 16, base & 0xFFFF
        fr = FR + ((t & 1) * 4 + j) * 8
        a.lds(f"ds_read_b128 v[{fr+4}:{fr+7}], v{V_B+wdw} offset:{off + j*1024}", ("fr", t, j))
        a.lds(f"ds_read_b64_tr_b16 v[{fr}:{fr+1}], v{V_A+wdw} offset:{off + j*2048}", ("fr", t, j))
        a.lds(f"ds_read_b64_tr_b16 v[{fr+2}:{fr+3}], v{V_A+wdw} offset:{off + j*2048 + 512}", ("fr", t, j))
    a.wait_vm(("slot", 0))
    a.e("s_barrier")
    for j in range(4):
        reads(0, j)
    for t in range(nsl):
        if t + 1 < nsl:
            a.wait_vm(("slot", t + 1))
            a.e("s_barrier")
            if t >= 1 and t - 1 + R < nsl:
                dma_slot(t - 1 + R)
        for j in range(4):
            a.wait_lg(("fr", t, j))
            fr = FR + ((t & 1) * 4 + j) * 8
            a.e(f"v_mfma_f32_32x32x16_bf16 v[{ACC}:{ACC+15}], v[{fr}:{fr+3}], v[{fr+4}:{fr+7}], v[{ACC}:{ACC+15}]")
            if t + 1 < nsl:
                reads(t + 1, j)
    a.wait_vm("res")
    a.e("s_nop 15")
    V_P = 112
    V_U = 120
    for q in range(4):
        for hh in range(2):
            src = V_RES + 2 * q + hh
            a.e(f"v_lshlrev_b32 v{V_U}, 16, v{src}")
            a.e(f"v_and_b32 v{V_U+1}, 0xffff0000, v{src}")
            a.e(f"v_add_f32 v{V_U}, v{ACC+4*q+2*hh}, v{V_U}")
            a.e(f"v_add_f32 v{V_U+1}, v{ACC+4*q+2*hh+1}, v{V_U+1}")
            a.e(f"v_cvt_pk_bf16_f32 v{V_P+2*q+hh}, v{V_U}, v{V_U+1}")
    if mode == "wo":
        V_S, V_Q, V_ONE = 122, 123, 124
        a.e(f"v_mov_b32 v{V_S}, 0")
        a.e(f"v_mov_b32 v{V_Q}, 0")
        a.e(f"v_mov_b32 v{V_ONE}, 0x3f803f80")
        for i in range(8):
            a.e(f"v_dot2c_f32_bf16 v{V_S}, v{V_P+i}, v{V_ONE}")
            a.e(f"v_dot2c_f32_bf16 v{V_Q}, v{V_P+i}, v{V_P+i}")
        a.e("s_nop 2")
        a.e(f"v_mov_b32 v{V_U}, v{V_S}")
        a.e(f"v_mov_b32 v{V_U+1}, v{V_Q}")
        a.e("s_nop 1")
        a.e(f"v_permlane32_swap_b32 v{V_U}, v{V_S}")
        a.e(f"v_permlane32_swap_b32 v{V_U+1}, v{V_Q}")
        a.e("s_nop 1")
        a.e(f"v_add_f32 v{V_S}, v{V_S}, v{V_U}")
        a.e(f"v_add_f32 v{V_Q}, v{V_Q}, v{V_U+1}")
    a.e("s_nop 1")
    for pr in range(2):
        a.e(f"v_permlane32_swap_b32 v{V_P+4*pr}, v{V_P+4*pr+2}")
        a.e(f"v_permlane32_swap_b32 v{V_P+4*pr+1}, v{V_P+4*pr+3}")
    if mode == "wo":
        a.e(f"s_lshl_b32 s{S_T0}, s{S_RB}, 1")
        a.e(f"s_add_u32 s{S_T0}, s{S_T0}, s{S_WT}")
        a.e(f"s_mul_i32 s{S_T0}, s{S_T0}, 28")
        a.e(f"s_lshl_b32 s{S_T1}, s{S_CT}, 2")
        a.e(f"s_add_u32 s{S_T0}, s{S_T0}, s{S_T1}")
        a.e(f"s_lshl_b32 s{S_T1}, s{S_WF}, 1")
        a.e(f"s_add_u32 s{S_T0}, s{S_T0}, s{S_T1}")
        a.e(f"s_lshl_b32 s{S_T0}, s{S_T0}, 10")
        a.e(f"s_add_u32 s{S_T0}, s{S_T0}, {WS_H:#x}")
        a.e(f"v_lshlrev_b32 v{V_T0}, 4, v1")
        for pr in range(2):
            a.vmem(f"buffer_store_dwordx4 v[{V_P+4*pr}:{V_P+4*pr+3}], v{V_T0}, s[{SRD_WS}:{SRD_WS+3}], s{S_T0} offen offset:{pr*1024}", "st")
        a.e(f"s_mul_i32 s{S_T0}, s60, 112")
        a.e(f"s_lshl_b32 s{S_T1}, s{S_CT}, 4")
        a.e(f"s_add_u32 s{S_T0}, s{S_T0}, s{S_T1}")
        a.e(f"s_lshl_b32 s{S_T1}, s{S_WF}, 3")
        a.e(f"s_add_u32 s{S_T0}, s{S_T0}, s{S_T1}")
        a.e(f"s_add_u32 s{S_T0}, s{S_T0}, {WS_ST:#x}")
        a.e(f"v_mul_u32_u24 v{V_T0}, 112, v{V_L31}")
        a.vmem(f"buffer_store_dwordx2 v[{V_S}:{V_S+1}], v{V_T0}, s[{SRD_WS}:{SRD_WS+3}], s{S_T0} offen", "st")
    else:
        a.e(f"v_mul_u32_u24 v{V_T0}, 896, v{V_L31}")
        a.e(f"v_lshlrev_b32 v{V_T1}, 4, v{V_HI}")
        a.e(f"v_add_u32 v{V_T0}, v{V_T0}, v{V_T1}")
        for pr in range(2):
            a.vmem(f"buffer_store_dwordx4 v[{V_P+4*pr}:{V_P+4*pr+3}], v{V_T0}, s[{SRD_B}:{SRD_B+3}], s61 offen offset:{pr*32}", "st")

def colsum_job(a):
    S_J, S_T0, S_T1 = 47, 49, 50
    a.e(f"s_lshl_b32 s{S_J}, s{S_XCD}, 2")
    a.e(f"s_add_u32 s{S_J}, s{S_J}, s{S_IDX}")
    a.e(f"s_sub_u32 s{S_J}, s{S_J}, 28")
    a.e(f"s_cmp_lt_u32 s{S_J}, 16")
    a.e(f"s_cselect_b32 s{SRD_A}, s{S_W1}, s{S_W3}")
    a.e(f"s_cselect_b32 s{SRD_A+1}, s{S_W1+1}, s{S_W3+1}")
    a.e(f"s_mov_b32 s{SRD_A+2}, {W1_BYTES:#x}")
    a.e(f"s_mov_b32 s{SRD_A+3}, {SRD3:#x}")
    a.e("v_mul_u32_u24 v2, 4682, v0")
    a.e("v_lshrrev_b32 v2, 16, v2")
    a.e("v_mul_u32_u24 v3, 14, v2")
    a.e("v_sub_u32 v3, v0, v3")
    a.e("v_mul_u32_u24 v4, 3584, v2")
    a.e("v_lshlrev_b32 v5, 4, v3")
    a.e("v_add_u32 v4, v4, v5")
    a.e(f"s_and_b32 s{S_T0}, s{S_J}, 15")
    a.e(f"s_mul_i32 s{S_T0}, s{S_T0}, 224")
    a.e("v_cmp_gt_u32 vcc, 224, v0")
    a.e("s_and_saveexec_b64 s[60:61], vcc")
    l_skip = a.newlabel("Lcs_skip")
    a.e(f"s_cbranch_execz {l_skip}")
    for i in range(28):
        a.vmem(f"buffer_load_dwordx4 v[{16+4*i}:{19+4*i}], v4, s[{SRD_A}:{SRD_A+3}], s{S_T0} offen", ("cs", i))
        a.e(f"s_add_u32 s{S_T0}, s{S_T0}, {16*3584}")
    a.e("v_mov_b32 v6, 0x00003f80")
    a.e("v_mov_b32 v7, 0x3f800000")
    for k in range(8):
        a.e(f"v_mov_b32 v{8+k}, 0")
    for i in range(28):
        a.wait_vm(("cs", i))
        for k in range(4):
            a.e(f"v_dot2c_f32_bf16 v{8+2*k}, v{16+4*i+k}, v6")
            a.e(f"v_dot2c_f32_bf16 v{9+2*k}, v{16+4*i+k}, v7")
    a.e("v_mul_u32_u24 v4, 448, v2")
    a.e("v_lshlrev_b32 v5, 5, v3")
    a.e("v_add_u32 v4, v4, v5")
    a.e("s_nop 2")
    a.lds("ds_write_b128 v4, v[8:11]")
    a.lds("ds_write_b128 v4, v[12:15] offset:16")
    a.label(l_skip)
    a.e("s_mov_b64 exec, s[60:61]")
    a.e("s_waitcnt lgkmcnt(0)")
    a.lg = []
    a.e("s_barrier")
    a.e("v_cmp_gt_u32 vcc, 112, v0")
    a.e("s_and_saveexec_b64 s[60:61], vcc")
    l_skip2 = a.newlabel("Lcs_skip")
    a.e(f"s_cbranch_execz {l_skip2}")
    a.e("v_lshlrev_b32 v4, 2, v0")
    for i in range(16):
        a.lds(f"ds_read_b32 v{16+i}, v4 offset:{i*448}")
    a.e("s_waitcnt lgkmcnt(0)")
    a.lg = []
    for i in range(1, 16):
        a.e(f"v_add_f32 v16, v16, v{16+i}")
    a.e(f"s_lshr_b32 s{S_T0}, s{S_J}, 4")
    a.e(f"s_mul_i32 s{S_T0}, s{S_T0}, 7168")
    a.e(f"s_and_b32 s{S_T1}, s{S_J}, 15")
    a.e(f"s_mul_i32 s{S_T1}, s{S_T1}, 448")
    a.e(f"s_add_u32 s{S_T0}, s{S_T0}, s{S_T1}")
    a.e(f"s_add_u32 s{S_T0}, s{S_T0}, {WS_CS:#x}")
    a.vmem(f"buffer_store_dword v16, v4, s[{SRD_WS}:{SRD_WS+3}], s{S_T0} offen", "st")
    a.label(l_skip2)
    a.e("s_mov_b64 exec, s[60:61]")

from gen_p13 import phase1, phase3

def kernel(name, body, nwg):
    a = Asm()
    a.endlabel = f"L{name}_end"
    a.lines.append(f".globl {name}\n.p2align 8\n.type {name},@function\n{name}:")
    prologue(a, nwg)
    body(a)
    a.label(a.endlabel)
    a.e("s_endpgm")
    return a.text()

def desc(name, vgpr, agpr=0, sgpr=96):
    acc = (vgpr + 3) // 4 * 4
    nf = acc + agpr if agpr else vgpr
    return f""".p2align 6
.amdhsa_kernel {name}
  .amdhsa_next_free_vgpr {nf}
  .amdhsa_next_free_sgpr {sgpr}
  .amdhsa_accum_offset {acc}
  .amdhsa_group_segment_fixed_size 0
  .amdhsa_kernarg_size 80
  .amdhsa_user_sgpr_count 2
  .amdhsa_user_sgpr_kernarg_segment_ptr 1
  .amdhsa_system_sgpr_workgroup_id_x 1
.end_amdhsa_kernel
"""

def k2_body(a):
    l_cs = a.newlabel("Lk2_cs")
    a.e(f"s_cmp_ge_u32 s{S_IDX}, 28")
    a.e(f"s_cbranch_scc1 {l_cs}")
    gemm64(a, "wo")
    a.e(f"s_branch {a.endlabel}")
    a.label(l_cs)
    a.vm = []; a.lg = []
    colsum_job(a)

def k4_body(a):
    a.e(f"s_cmp_ge_u32 s{S_IDX}, 28")
    a.e(f"s_cbranch_scc1 {a.endlabel}")
    gemm64(a, "w2")

def k3_body(a):
    a.e(f"s_cmp_ge_u32 s{S_IDX}, 28")
    a.e(f"s_cbranch_scc1 {a.endlabel}")
    phase3(a)

HEADER = """; Kernarg layout for this problem (80 bytes, ptrs only, base s[0:1]):
;   offset  16: d_in[2] A_wo  shape=(448, 448) dtype=bfloat16
"""

def build(which=("k1", "k2", "k3", "k4")):
    specs = {
        "k1": ("k1_kernel", phase1, 256, 163840, 256, 0),
        "k2": ("k2_kernel", k2_body, 256, 114688, 136, 0),
        "k3": ("k3_kernel", k3_body, 256, 163840, 256, 112),
        "k4": ("k4_kernel", k4_body, 256, 147456, 136, 0),
    }
    out = HEADER
    for k in which:
        n, b, g, lds, v, ag = specs[k]
        out += f"; @launch kernel={n} grid=({g},1,1) block=(256,1,1) lds={lds}\n"
    out += '.amdgcn_target "amdgcn-amd-amdhsa--gfx950"\n.text\n'
    for k in dict.fromkeys(which):
        n, b, g, lds, v, ag = specs[k]
        out += kernel(n, b, g)
    out += '.section .rodata,"a"\n'
    for k in dict.fromkeys(which):
        n, b, g, lds, v, ag = specs[k]
        out += desc(n, v, ag)
    return out

if __name__ == "__main__":
    which = sys.argv[2].split(",") if len(sys.argv) > 2 else ("k1", "k2", "k3", "k4")
    open(sys.argv[1], "w").write(build(which))
```
